```python
import torch

def _softmax(x, axis=-1):
    return torch.softmax(x, dim=axis)

def _gelu(x):
    return torch.nn.functional.gelu(x, approximate='tanh')

def _silu(x):
    return torch.nn.functional.silu(x)

def _sigmoid(x):
    return torch.sigmoid(x)

def _layernorm(x, axis=-1, eps=1e-05):
    m = x.mean(dim=axis, keepdim=True)
    v = x.var(dim=axis, keepdim=True, unbiased=False)
    return (x - m) / torch.sqrt(v + eps)

def _scatter_add(tgt, idx, src, axis=0):
    return tgt.clone().index_add_(axis, idx, src)

def _segment_sum(src, seg, n):
    out = torch.zeros((n,) + src.shape[1:], dtype=src.dtype)
    return out.index_add_(0, seg, src)

def _pad(x, pw):
    flat = tuple((v for pair in reversed(pw) for v in pair))
    return torch.nn.functional.pad(x, flat)
kernel_name = 'standalone__window_attn_davit__vision'

def setup_inputs():

    _w = lambda a: (lambda t: t.to(torch.bfloat16) if t.is_floating_point() else t)(torch.as_tensor(a))
    HW = 224
    C0 = 192
    ws = 7
    nh = 4
    H = W = max(HW // ws * ws, ws)
    C = max(C0 // nh * nh, nh)
    k = 3
    return {'x': _w((lambda *s: torch.randn(*s, dtype=torch.bfloat16) * 1.6)(1, H, W, C)), 'dw_pe': _w((lambda *s: torch.randn(*s, dtype=torch.bfloat16) * 1.6)(k, k, C) * 0.1), 'w_qkv': _w((lambda *s: torch.randn(*s, dtype=torch.bfloat16) * 1.6)(C, 3 * C) * C ** (-0.5)), 'w_o': _w((lambda *s: torch.randn(*s, dtype=torch.bfloat16) * 0.4)(C, C) * C ** (-0.5))}

def reference(x, dw_pe, w_qkv, w_o):
    B, H, W, C = x.shape
    ws = 7
    nh = 4
    dh = C // nh
    kk = dw_pe.shape[0]
    pad = kk // 2
    xp = _pad(x, ((0, 0), (pad, pad), (pad, pad), (0, 0)))
    pe = torch.zeros_like(x)
    for i in range(kk):
        for j in range(kk):
            pe = pe + xp[:, i:i + H, j:j + W, :] * dw_pe[i, j][None, None, None, :]
    x0 = x + pe
    h = _layernorm(x0, axis=-1)
    hw = h.reshape(B, H // ws, ws, W // ws, ws, C)
    hw = (lambda x, *d: x.permute(*d))(hw, 0, 1, 3, 2, 4, 5)
    hw = hw.reshape(-1, ws * ws, C)
    qkv = (hw @ w_qkv).reshape(-1, ws * ws, 3, nh, dh)
    q = qkv[:, :, 0].clone()
    k = qkv[:, :, 1].clone()
    v = qkv[:, :, 2].clone()
    scale = dh ** (-0.5)
    attn = torch.einsum('wnhd,wmhd->whnm', q, k) * scale
    attn = _softmax(attn, axis=-1)
    out = torch.einsum('whnm,wmhd->wnhd', attn, v)
    out = out.reshape(-1, ws * ws, C) @ w_o
    out = out.reshape(B, H // ws, W // ws, ws, ws, C)
    out = (lambda x, *d: x.permute(*d))(out, 0, 1, 3, 2, 4, 5)
    out = out.reshape(B, H, W, C)
    return x0 + out
```

```python
import re, heapq

ASYNC_LGKM = ("dsr", "dsw")
ASYNC_VM = ("vld", "dma", "vst")
VALU_KINDS = ("valu", "trans", "perm")

def regs(spec):
    if isinstance(spec, (list, tuple, set)):
        out = []
        for s in spec: out += regs(s)
        return out
    m = re.fullmatch(r"([vas])\[(\d+):(\d+)\]", spec)
    if m: return [f"{m.group(1)}{i}" for i in range(int(m.group(2)), int(m.group(3)) + 1)]
    return [spec]

class Op:
    def __init__(self, text, kind, rd=(), wr=(), cost=None, lat=None, n=1, cin=(), opc=None, tag=""):
        self.text = text; self.kind = kind
        self.rd = regs(rd); self.wr = regs(wr)
        self.cin = regs(cin)
        self.opc = opc or text.split()[0]
        self.cost = cost; self.lat = lat
        self.n = n
        self.preds = []
        self.succs = []
        self.tag = tag
        self.prio = 0; self.bias = 0
        self.idx = None; self.pos = None; self.t = None; self.done = None
        self.notbefore = 0

class Prog:
    def __init__(self):
        self.ops = []
        self.lastw = {}; self.readers = {}
    def add(self, op):
        op.idx = len(self.ops)
        for r in op.rd:
            w = self.lastw.get(r)
            if w is not None: self.edge(w, op, "RAW", r)
        for r in op.wr:
            w = self.lastw.get(r)
            if w is not None: self.edge(w, op, "WAW", r)
            for q in self.readers.get(r, ()):
                if q is not op: self.edge(q, op, "WAR", r)
        for r in op.rd: self.readers.setdefault(r, []).append(op)
        for r in op.wr:
            self.lastw[r] = op; self.readers[r] = []
        self.ops.append(op)
        return op
    def edge(self, a, b, typ, r=None):
        assert a.idx < b.idx, (a.text, b.text)
        b.preds.append((a, typ, r)); a.succs.append((b, typ, r))

def states_needed(p, c, typ, r):
    pk, ck = p.kind, c.kind
    isv = r is not None and r[0] in "va" and r not in ("vcc",)
    iss = r is not None and (r[0] == "s" and r != "scc" or r == "vcc")
    if pk == "mfma":
        if typ == "RAW":
            if ck == "mfma":
                if r in c.cin and r not in [x for x in c.rd if c.rd.count(x) > 1]:
                    if c.cin == p.wr and c.opc == p.opc: return 0
                    return 6
                return 8
            return 8
        if typ == "WAW":
            if ck == "mfma": return 0 if (c.wr == p.wr) else 6
            return 8
        if typ == "WAR":
            if r in p.cin and ck != "mfma": return 3
            return 0
    if pk in VALU_KINDS:
        if typ == "RAW" and isv:
            if ck == "mfma": return 2
            if ck == "perm": return 2
            if c.opc.startswith("v_readfirstlane") or c.opc.startswith("v_readlane"): return 1
            if "dpp" in c.opc: return 2
            if pk == "trans" and ck in VALU_KINDS: return 1
            return 0
        if typ == "RAW" and iss:
            if ck in VALU_KINDS: return 2
            if ck in ASYNC_VM: return 5
            return 2
        return 0
    if pk == "salu":
        if typ == "RAW" and r == "m0": return 1
        return 0
    if pk == "vst" and typ == "WAR" and isv and ("x4" in p.opc or "x3" in p.opc):
        return 2
    return 0

def needs_complete(p, typ):
    if p.kind in ASYNC_LGKM or p.kind in ASYNC_VM:
        if typ == "CMP": return True
        if typ in ("RAW", "WAW") and p.kind in ("dsr", "vld"): return True
    return False

def edge_latency(p, c, typ, r):
    if needs_complete(p, typ): return p.lat
    if p.kind == "mfma":
        s = states_needed(p, c, typ, r)
        if typ == "RAW" and c.kind == "mfma" and s == 0: return 16
        return max(4, 4 * s)
    s = states_needed(p, c, typ, r)
    return (p.cost or 4) + 4 * s

DEF_COST = {"mfma": 8, "valu": 4, "trans": 8, "perm": 8, "dsr": 4, "dsw": 12, "vld": 8, "dma": 8, "vst": 12,
            "salu": 4, "bar": 24}
DEF_LAT = {"dsr": 128, "dsw": 100, "vld": 2000, "dma": 2000, "vst": 1000}

def schedule(prog, inorder=False, window=100000, verbose=False, st_gap=200):
    ops = prog.ops
    for o in ops:
        if o.cost is None: o.cost = DEF_COST[o.kind]
        if o.lat is None: o.lat = DEF_LAT.get(o.kind, 0)
    for o in reversed(ops):
        best = 0
        for (s, typ, r) in o.succs:
            best = max(best, s.prio + edge_latency(o, s, typ, r))
        o.prio = best + o.bias
    npred = {o: len(set(p for p, _, _ in o.preds)) for o in ops}
    ready = [o for o in ops if npred[o] == 0]
    out = []
    t = 0; pipe_free = 0; port_free = 0; last_valu = -100; st_free = 0
    lg = []; vm = []
    nstate = 0
    last_mfma_out = None
    stats = dict(idle=0, nops=0, waits=0, freewaits=0)
    remaining = len(ops)
    next_inorder = 0

    def data_ready(o):
        e = o.notbefore
        for (p, typ, r) in o.preds:
            if needs_complete(p, typ): e = max(e, p.done)
            elif p.kind == "mfma" and typ == "RAW" and o.kind != "mfma": e = max(e, p.t + 24)
            elif p.kind == "mfma" and typ == "RAW": e = max(e, p.t + 16)
        return e
    def lack_states(o):
        need = 0
        for (p, typ, r) in o.preds:
            s = states_needed(p, o, typ, r)
            if s: need = max(need, s - (nstate - p.pos - 1))
        return need
    def wait_needed(o):
        wl = wv = None
        for (p, typ, r) in o.preds:
            if needs_complete(p, typ):
                if p.kind in ASYNC_LGKM and p in lg:
                    k = len(lg) - 1 - max(i for i, x in enumerate(lg) if x is p)
                    wl = k if wl is None else min(wl, k)
                if p.kind in ASYNC_VM and p in vm:
                    k = len(vm) - 1 - max(i for i, x in enumerate(vm) if x is p)
                    wv = k if wv is None else min(wv, k)
        return wl, wv
    def res_ready(o):
        k = o.kind
        if k == "mfma": return max(t, pipe_free, port_free)
        if k in VALU_KINDS: return max(t, port_free)
        if k in ASYNC_LGKM: return max(t, port_free, last_valu + 8)
        if k in ASYNC_VM:
            e = max(t, port_free, last_valu + 8)
            if k == "vst": e = max(e, st_free)
            return e
        return t

    while remaining:
        if inorder:
            cand = [ops[next_inorder]]; next_inorder += 1
        else:
            lo = min(o.idx for o in ready)
            cand = [o for o in ready if o.idx <= lo + window]
        best = None
        for o in cand:
            dr = data_ready(o)
            wl, wv = wait_needed(o)
            if wl is not None: wl = min(wl, 15)
            if wv is not None: wv = min(wv, 63)
            if wl is not None:
                for x in lg[:len(lg) - wl]: dr = max(dr, x.done)
            if wv is not None:
                for x in vm[:len(vm) - wv]: dr = max(dr, x.done)
            e = max(res_ready(o), dr, t + 4 * lack_states(o))
            if o.kind in ASYNC_LGKM and len(lg) + o.n > 15:
                e = max(e, lg[len(lg) + o.n - 16].done)
            if o.kind in ASYNC_VM and len(vm) + o.n > 62:
                e = max(e, vm[len(vm) + o.n - 63].done)
            cls = {"mfma": 0, "salu": 1, "bar": 1, "dsr": 2, "dma": 2, "vld": 2, "dsw": 2, "vst": 2}.get(o.kind, 3)
            key = (e, cls, -o.prio, o.idx)
            if best is None or key < best[0]: best = (key, o, dr, wl, wv)
        key, o, dr, wl, wv = best
        if wl is not None: wl = min(wl, 15)
        if wv is not None: wv = min(wv, 63)
        if wl is not None or wv is not None:
            placed = False
            if last_mfma_out is not None:
                mi = last_mfma_out
                between = out[mi + 1:]
                nl = sum(x[2].n for x in between if x[2] is not None and x[1] in ASYNC_LGKM)
                nv = sum(x[2].n for x in between if x[2] is not None and x[1] in ASYNC_VM)
                ok = (wl is None or wl - nl >= 0) and (wv is None or wv - nv >= 0) and dr <= out[mi][2].t + 4
                ok = ok and not any(x[1] == "bar" for x in between)
                if ok:
                    txt = "s_waitcnt" + (f" vmcnt({wv - nv})" if wv is not None else "") + (f" lgkmcnt({wl - nl})" if wl is not None else "")
                    out.insert(mi + 1, [txt, "wait", None])
                    for x in between:
                        if x[2] is not None: x[2].pos += 1
                    nstate += 1
                    last_mfma_out = None
                    placed = True; stats["freewaits"] += 1
            if not placed:
                txt = "s_waitcnt" + (f" vmcnt({wv})" if wv is not None else "") + (f" lgkmcnt({wl})" if wl is not None else "")
                out.append([txt, "wait", None]); nstate += 1
                if out[-2][1] == "mfma": last_mfma_out = None
                t = max(t + 4, dr); stats["waits"] += 1
            if wl is not None: del lg[:len(lg) - wl]
            if wv is not None: del vm[:len(vm) - wv]
        ls = lack_states(o)
        while ls > 0:
            k = min(ls, 16)
            out.append([f"s_nop {k - 1}", "nop", None]); nstate += k; t += 4 * k; ls -= k; stats["nops"] += k
            if len(out) >= 2 and out[-2][1] == "mfma": last_mfma_out = None
        e = max(res_ready(o), dr)
        if o.kind in ASYNC_LGKM and len(lg) + o.n > 15: e = max(e, lg[len(lg) + o.n - 16].done)
        if o.kind in ASYNC_VM and len(vm) + o.n > 62: e = max(e, vm[len(vm) + o.n - 63].done)
        o.t = e; o.pos = nstate; nstate += 1
        out.append([o.text, o.kind, o])
        k = o.kind
        if k == "mfma":
            t = e + 4; port_free = e + 8; pipe_free = e + 16; last_mfma_out = len(out) - 1
        elif k in VALU_KINDS:
            t = e + o.cost; port_free = t; last_valu = t
        elif k in ASYNC_LGKM or k in ASYNC_VM:
            t = e + o.cost; port_free = t
            o.done = e + o.lat
            q = lg if k in ASYNC_LGKM else vm
            if q: o.done = max(o.done, q[-1].done)
            q.extend([o] * o.n)
            if k == "vst": st_free = e + st_gap
        else:
            t = e + o.cost
            if len(out) >= 2 and out[-2][1] == "mfma": last_mfma_out = None
        remaining -= 1
        if not inorder:
            ready.remove(o)
            seen = set()
            for (s, _, _) in o.succs:
                if s in seen: continue
                seen.add(s)
                npred[s] -= 1
                if npred[s] == 0: ready.append(s)
    stats["cycles"] = t
    return out, stats
```

```python
import sys, math, struct
from sched import *

NAME = "standalone__window_attn_davit__vision"
XBYTES = 224 * 224 * 384
ROW = 86016
X_ = 0; XP = 4256; CP = 416
DGL = 38400; WOL = 62976; H1 = 99840; O_ = 118272; H0 = 136704; HE = 155136; ST = 161280; LDS_END = 163328
FB = H1
HB = [H0 - FB, H1 - FB]; OB = O_ - FB; HEB = HE - FB

def f2u(x): return struct.unpack("<I", struct.pack("<f", x))[0]

class G:
    def __init__(self, opts):
        self.o = opts
        self.p = Prog()
        self.vn = 1
        self.dumps = 0
    def valloc(self, n, al=1):
        self.vn = (self.vn + al - 1) // al * al
        b = self.vn; self.vn += n
        assert self.vn <= 256, "out of VGPRs"
        return b
    def add(self, *a, **k): return self.p.add(Op(*a, **k))
    def valu(self, opc, dst, *src, kind="valu", extra_rd=(), extra_wr=(), sfx=""):
        rd = [s.lstrip("-") for s in src if isinstance(s, str) and re.fullmatch(r"-?([vas]\d+|[vas]\[\d+:\d+\]|vcc|exec)", s)]
        txt = f"{opc} {dst}, " + ", ".join(str(s) for s in src) + sfx
        return self.add(txt, kind, rd=rd + list(extra_rd), wr=[dst] + list(extra_wr))
    def salu(self, opc, dst, *src, scc=True, rdscc=False):
        rd = [s for s in src if isinstance(s, str) and re.fullmatch(r"(s\d+|s\[\d+:\d+\]|vcc|exec|m0)", s)]
        txt = f"{opc} {dst}, " + ", ".join(str(s) for s in src)
        return self.add(txt, "salu", rd=rd + (["scc"] if rdscc else []), wr=[dst] + (["scc"] if scc else []))
    def mfma(self, d, a, b, c, k=32):
        opc = f"v_mfma_f32_16x16x{k}_bf16"
        cin = [] if c == 0 else [c]
        return self.add(f"{opc} {d}, {a}, {b}, {c}", "mfma", rd=[a, b] + cin, wr=[d], cin=cin)
    def smfmac(self, d, a, b, idx):
        return self.add(f"v_smfmac_f32_16x16x64_bf16 {d}, {a}, {b}, {idx}", "mfma", rd=[a, b, idx, d], wr=[d], cin=[d])
    def dsr(self, opc, dst, addr, off, **k):
        assert 0 <= off < 65536, off
        return self.add(f"{opc} {dst}, {addr} offset:{off}", "dsr", rd=[addr], wr=[dst], **k)
    def dsw(self, opc, addr, src, off, **k):
        assert 0 <= off < 65536, off
        cost = {"ds_write_b32": 8, "ds_write_b64": 12, "ds_write_b128": 20}[opc]
        return self.add(f"{opc} {addr}, {src} offset:{off}", "dsw", rd=[addr, src], cost=cost, **k)
    def bar(self, name, needs):
        b = self.add(f"s_barrier", "bar", rd=["BAR"], wr=["BAR"], tag=name)
        for n in needs: self.p.edge(n, b, "CMP")
        return b
    def after(self, ops, b):
        for o in ops: self.p.edge(b, o, "ORD")

def V(b, n=1): return f"v{b}" if n == 1 else f"v[{b}:{b+n-1}]"
def A(b, n=1): return f"a{b}" if n == 1 else f"a[{b}:{b+n-1}]"
def S(b, n=1): return f"s{b}" if n == 1 else f"s[{b}:{b+n-1}]"

KSTEP_BLOCKS = [(0, 1), (3, 4), (6, 7), (9, 10), (2, 5), (8, 11)]
BLOCK_KSTEP = {}
for s_, (a_, b_) in enumerate(KSTEP_BLOCKS):
    BLOCK_KSTEP[a_] = (s_, 0); BLOCK_KSTEP[b_] = (s_, 1)

def build(opts):
    g = G(opts); p = g.p
    dbg = opts.get("dbg")
    sX, sXT, sXB, sWQ, sWO, sOUT, sDW, sWS = 20, 24, 28, 32, 36, 40, 44, 48
    sW, sORG, sC, sM0X, sM0W, sWROW, sWC0 = 52, 53, 54, 55, 56, 57, 58
    sRC, sEPS = 59, 60
    sEM = 62
    sT = [64 + i for i in range(24)]
    sTn = [0]
    def stmp():
        r = sT[sTn[0] % len(sT)]; sTn[0] += 1; return r
    sORGn = [88, 89, 90, 91]
    sMK = [92, 94, 96, 98]

    head = f"""
    s_cmp_ge_u32 s2, 256
    s_cbranch_scc1 L_end
    s_load_dwordx8 s[4:11], s[0:1], 0
    s_load_dwordx4 s[12:15], s[0:1], 32
    s_load_dwordx2 s[16:17], s[0:1], 48
    v_lshrrev_b32 v1, 6, v0
    s_and_b32 s{sWROW}, s2, 7
    s_lshl_b32 s{sWROW}, s{sWROW}, 2
    v_readfirstlane_b32 s{sW}, v1
    s_lshr_b32 s3, s2, 6
    s_add_u32 s{sWROW}, s{sWROW}, s3
    s_bfe_u32 s{sWC0}, s2, 0x30003
    s_lshl_b32 s{sWC0}, s{sWC0}, 2
    s_mul_i32 s{sORG}, s{sWROW}, {7*ROW}
    s_mul_i32 s3, s{sWC0}, {7*384}
    s_add_u32 s{sORG}, s{sORG}, s3
    s_mov_b32 s{sORGn[0]}, s{sORG}
    s_add_u32 s{sORGn[1]}, s{sORG}, {2688}
    s_add_u32 s{sORGn[2]}, s{sORG}, {2*2688}
    s_add_u32 s{sORGn[3]}, s{sORG}, {3*2688}
    s_lshl_b32 s{sM0X}, s{sW}, 10
    s_mul_i32 s{sM0W}, s{sW}, 9216
    s_add_u32 s{sM0W}, s{sM0W}, {WOL}
    s_mov_b32 s{sC}, {hex(f2u(48 ** -0.5 * math.log2(math.e)))}
    s_mov_b32 s{sRC}, {hex(f2u(1.0 / 192))}
    s_mov_b32 s{sEPS}, {hex(f2u(1e-5))}
    s_mov_b32 s{sX+2}, {XBYTES + ROW + 384}
    s_mov_b32 s{sX+3}, 0x20000
    s_cmp_eq_u32 s{sWROW}, 0
    s_cselect_b32 s{sXT+2}, 0, s{sX+2}
    s_mov_b32 s{sXT+3}, 0x20000
    s_cmp_eq_u32 s{sWROW}, 31
    s_cselect_b32 s{sXB+2}, 0, s{sX+2}
    s_mov_b32 s{sXB+3}, 0x20000
    s_mov_b32 s{sWQ+2}, {192*576*2}
    s_mov_b32 s{sWQ+3}, 0x20000
    s_mov_b32 s{sWO+2}, {192*192*2}
    s_mov_b32 s{sWO+3}, 0x20000
    s_mov_b32 s{sOUT+2}, {XBYTES}
    s_mov_b32 s{sOUT+3}, 0x20000
    s_mov_b32 s{sDW+2}, {9*192*2}
    s_mov_b32 s{sDW+3}, 0x20000
    s_mov_b32 s{sWS+2}, 0x10000000
    s_mov_b32 s{sWS+3}, 0x20000
"""
    head2 = f"""
    s_waitcnt lgkmcnt(0)
    s_sub_u32 s{sX}, s4, {ROW + 384}
    s_subb_u32 s{sX+1}, s5, 0
    s_mov_b32 s{sXT}, s{sX}
    s_mov_b32 s{sXT+1}, s{sX+1}
    s_mov_b32 s{sXB}, s{sX}
    s_mov_b32 s{sXB+1}, s{sX+1}
    s_mov_b32 s{sWQ}, s8
    s_mov_b32 s{sWQ+1}, s9
    s_mov_b32 s{sDW}, s6
    s_mov_b32 s{sDW+1}, s7
    s_mov_b32 s{sWO}, s10
    s_mov_b32 s{sWO+1}, s11
    s_mov_b32 s{sOUT}, s12
    s_mov_b32 s{sOUT+1}, s13
    s_mov_b32 s{sWS}, s16
    s_mov_b32 s{sWS+1}, s17
"""
    vCa = [g.valloc(1) for _ in range(3)]; vCb = [g.valloc(1) for _ in range(3)]
    vFR, vFW4, vFW2, vSW, vSR = [g.valloc(1) for _ in range(5)]
    vO = [g.valloc(1) for _ in range(3)]
    vXD, vDG, vTR, vIDX = [g.valloc(1) for _ in range(4)]
    vXV = g.valloc(1)
    DD = g.valloc(12, 4)
    XR = [g.valloc(36, 4), g.valloc(36, 4)]
    KR = g.valloc(24, 2)
    VR = g.valloc(24, 4)
    QE = g.valloc(6, 2)
    QR = g.valloc(6, 2)
    SP = [g.valloc(16, 4), g.valloc(16, 4)]
    AC = [g.valloc(12, 4), g.valloc(12, 4)]
    NF = opts.get("nf", 5 if dbg is None else 4)
    FP = [g.valloc(4, 4) for _ in range(NF)]
    NT = g.valloc(8, 4)
    LN = g.valloc(4)
    MT = g.valloc(4)
    print("VGPRs used:", g.vn, file=sys.stderr)
    def WF(part, jt, s):
        return part * 72 + (jt * 6 + s) * 4
    WOA = {0: 0, 1: 1, 4: 2}
    def WOF(jt, s): return 216 + (jt * 3 + WOA[s]) * 4
    ONES = 252
    fpn = [0]
    def frag():
        r = FP[fpn[0] % NF]; fpn[0] += 1; return r
    acn = [0]
    def acc():
        r = AC[acn[0] % 2]; acn[0] += 1; return r

    def dump(reg, n, slot):
        if dbg is None: return
        for i in range(n):
            so = stmp()
            g.salu("s_mov_b32", S(so), (slot * 64 + i) * 1024, scc=False)
            g.add(f"buffer_store_dword v{reg+i}, v{vDUMP}, s[{sWS}:{sWS+3}], s{so} offen", "vst", rd=[V(reg + i), V(vDUMP), S(so)])
    tl, tg, ti, t0, t1, t2, t3, t4 = [AC[0] + i for i in range(8)]
    fixed = []
    g.valu("v_and_b32", V(tl), 63, "v0")
    g.valu("v_bfe_u32", V(tg), "v0", 4, 2)
    g.valu("v_and_b32", V(ti), 15, "v0")
    if dbg is not None:
        vDUMP = g.valloc(1)
        g.valu("v_lshlrev_b32", V(vDUMP), 2, "v0")
        so = stmp()
        g.add(f"s_cmp_eq_u32 s2, {dbg}", "salu", wr=["scc"])
        g.salu("s_cselect_b32", S(so), 0, 0x40000000, scc=False, rdscc=True)
        g.valu("v_add_u32", V(vDUMP), S(so), V(vDUMP))
    g.valu("v_mul_u32_u24", V(t0), 2521, "v0")
    g.valu("v_lshrrev_b32", V(t0), 16, V(t0))
    g.valu("v_mul_u32_u24", V(t1), 26, V(t0))
    g.valu("v_sub_u32", V(t1), "v0", V(t1))
    g.valu("v_mul_u32_u24", V(t2), 384, V(t0))
    g.valu("v_lshl_add_u32", V(t2), V(t1), 4, V(t2))
    g.add(f"v_cmp_gt_u32 vcc, 24, v{t1}", "valu", rd=[V(t1)], wr=["vcc"])
    g.valu("v_mov_b32", V(t3), "0x80000000")
    g.valu("v_cndmask_b32", V(t2), V(t3), V(t2), "vcc")
    g.add(f"v_cmp_gt_u32 vcc, 9, v{t0}", "valu", rd=[V(t0)], wr=["vcc"])
    g.valu("v_cndmask_b32", V(vXD), V(t3), V(t2), "vcc")
    def x_variant(n):
        if n in (1, 2): return vXD
        so = stmp()
        if n == 0:
            g.add(f"s_cmp_eq_u32 s{sWC0}, 0", "salu", rd=[S(sWC0)], wr=["scc"])
            g.salu("s_cselect_b32", S(so), 384, 0, scc=False, rdscc=True)
            g.add(f"v_cmp_le_u32 vcc, s{so}, v{vXD}", "valu", rd=[S(so), V(vXD)], wr=["vcc"])
        else:
            g.add(f"s_cmp_eq_u32 s{sWC0}, 28", "salu", rd=[S(sWC0)], wr=["scc"])
            g.salu("s_cselect_b32", S(so), 8 * 384, -1, scc=False, rdscc=True)
            g.add(f"v_cmp_gt_u32 vcc, s{so}, v{vXD}", "valu", rd=[S(so), V(vXD)], wr=["vcc"])
        g.valu("v_mov_b32", V(vXV), "0x80000000")
        g.valu("v_cndmask_b32", V(vXV), V(vXV), V(vXD), "vcc")
        return vXV
    vmchain = [None]
    def chain(o):
        if vmchain[0] is not None: p.edge(vmchain[0], o, "ORD")
        vmchain[0] = o
        return o
    def x_dma(n, lat):
        vo = x_variant(n); ops = []
        for rr in range(9):
            so = stmp()
            g.salu("s_add_u32", S(so), S(sORGn[n]), rr * ROW)
            g.salu("s_add_u32", "m0", S(sM0X), X_ + rr * XP)
            srd = sXT if rr == 0 else sXB if rr == 8 else sX
            o = g.add(f"buffer_load_dwordx4 v{vo}, s[{srd}:{srd+3}], s{so} offen lds", "dma",
                      rd=[V(vo), S(so), "m0", "PTR"], lat=lat)
            o.bias = 0
            ops.append(chain(o))
        return ops
    ptr = g.add(head2.strip(), "salu", wr=["PTR", "scc"], cost=300)
    x0ops = x_dma(0, 2500)
    dwa = [SP[0] + i for i in range(3)]
    dwv = [SP[0] + 4 + i for i in range(9)]
    sW96 = stmp();
    sW96 = 61
    g.salu("s_mul_i32", S(sW96), S(sW), 96, scc=False)
    g.valu("v_and_b32", V(t0), 1, V(tg))
    g.valu("v_lshrrev_b32", V(t1), 1, V(tg))
    g.valu("v_lshl_add_u32", V(t3), V(ti), 1, S(sW96))
    g.valu("v_mul_u32_u24", V(t2), 3 * 384, V(t0))
    g.valu("v_add_u32", V(t2), V(t2), V(t3))
    g.valu("v_mul_u32_u24", V(t4), 384, V(t1))
    g.valu("v_add_u32", V(dwa[0]), V(t2), V(t4))
    g.valu("v_lshl_add_u32", V(dwa[1]), V(t4), 1, V(t2))
    g.valu("v_lshl_add_u32", V(dwa[2]), V(t4), 1, V(t3))
    for f in range(3):
        for j in range(3):
            off = [0, 2 * 384, 6 * 384][f] + 32 * j
            chain(g.add(f"buffer_load_ushort v{dwv[f*3+j]}, v{dwa[f]}, s[{sDW}:{sDW+3}], 0 offen offset:{off}", "vld",
                  rd=[V(dwa[f]), "PTR"], wr=[V(dwv[f * 3 + j])], lat=2500))
    ea, eb = SP[0] + 13, SP[0] + 14
    g.valu("v_lshrrev_b32", V(t2), 2, V(ti))
    g.valu("v_mul_u32_u24", V(t2), 2688, V(t2))
    g.valu("v_lshl_add_u32", V(t2), V(t0), 4, V(t2))
    g.valu("v_add_u32", V(t2), S(sW96), V(t2))
    g.valu("v_add_u32", V(t2), 3 * ROW + 3 * 384, V(t2))
    g.valu("v_mul_u32_u24", V(t4), ROW, V(t1))
    g.valu("v_add_u32", V(ea), V(t2), V(t4))
    g.valu("v_mul_u32_u24", V(t4), 768, V(t1))
    g.valu("v_add_u32", V(eb), V(t2), V(t4))
    sE1, sE2 = 100, 101
    g.salu("s_add_u32", S(sE1), S(sORG), ROW)
    g.salu("s_add_u32", S(sE2), S(sORG), 2 * ROW)
    EB8 = [[XR[1] + 0, XR[1] + 8], [XR[1] + 16, XR[1] + 24], [VR, VR + 8]]
    EB4 = [XR[1] + 32, VR + 16, VR + 20]
    def eload(dst, a, so, off):
        return chain(g.add(f"buffer_load_dwordx4 {V(dst,4)}, v{a}, s[{sX}:{sX+3}], s{so} offen offset:{off}", "vld",
                     rd=[V(a), S(so), "PTR"], wr=[V(dst, 4)], lat=2500))
    for j in range(3):
        eload(EB4[j], eb, sE2, 32 * j)
        eload(EB8[j][0], ea, sORG, 32 * j); eload(EB8[j][0] + 4, ea, sORG, 384 + 32 * j)
        eload(EB8[j][1], ea, sORG, 768 + 32 * j); eload(EB8[j][1] + 4, ea, sE1, 384 + 32 * j)
    wq_off = [NT + 0, NT + 1, NT + 2]
    wo_off = [MT + 0, MT + 1, MT + 2]
    WQ_OFF = [vO[0], vO[1], vO[2]]
    for i in range(3):
        g.valu("v_add_u32", V(t2), 64 * i, V(tl))
        g.valu("v_mul_u32_u24", V(t3), 10923, V(t2))
        g.valu("v_lshrrev_b32", V(t3), 16, V(t3))
        g.valu("v_mul_u32_u24", V(t4), 6, V(t3))
        g.valu("v_sub_u32", V(t4), V(t2), V(t4))
        g.valu("v_lshl_add_u32", V(t4), V(t4), 4, S(sW96))
        g.valu("v_mul_u32_u24", V(t3), 1152, V(t3))
        g.valu("v_add_u32", V(WQ_OFF[i]), V(t4), V(t3))
    g.valu("v_lshrrev_b32", V(t2), 2, V(tl))
    g.valu("v_mul_u32_u24", V(t2), 96, V(t2))
    g.valu("v_and_b32", V(t3), 3, V(tl))
    g.valu("v_lshl_add_u32", V(t2), V(t3), 3, V(t2))
    g.valu("v_add_u32", V(vTR), S(sM0W), V(t2))
    SLOT = [0, 3072, 6144, 36864, 36864 + 3072, 36864 + 6144]
    slot_reads = [[] for _ in range(6)]
    chunk_dma = {}
    wlat = [opts.get("wlat0", 3000)]
    def w_dma(part, c, slot, lat=1500):
        ops = []
        so = stmp()
        if part < 3:
            col = [384, 0, 768][part]
            g.salu("s_mov_b32", S(so), c * 32 * 1152 + col, scc=False); srd = sWQ
        else:
            g.salu("s_mov_b32", S(so), c * 32 * 384, scc=False); srd = sWO
        for i in range(3):
            g.salu("s_add_u32", "m0", S(sM0W), SLOT[slot] + 1024 * i)
            vo = WQ_OFF[i]
            o = g.add(f"buffer_load_dwordx4 v{vo}, s[{srd}:{srd+3}], s{so} offen lds", "dma",
                      rd=[V(vo), S(so), "m0", "PTR"], lat=lat)
            for r in slot_reads[slot]: p.edge(r, o, "CMP")
            ops.append(chain(o))
        slot_reads[slot] = []
        chunk_dma[(part, c)] = (ops, slot)
    def w_read(part, c):
        ops, slot = chunk_dma[(part, c)]
        res = []
        for b in range(2):
            s, half = BLOCK_KSTEP[2 * c + b]
            for jt in range(3):
                base = (WF(part, jt, s) if part < 3 else WOF(jt, s)) + 2 * half
                o = g.dsr("ds_read_b64_tr_b16", A(base, 2), V(vTR), SLOT[slot] + b * 1536 + 32 * jt)
                for d in ops: p.edge(d, o, "CMP")
                slot_reads[slot].append(o); res.append(o)
        return res
    for c in range(6): w_dma(0, c, c, lat=3000 + 220 * c)
    g.valu("v_lshlrev_b32", V(t2), 4, V(tl))
    g.valu("v_add_u32", V(vFR), FB, V(t2))
    g.valu("v_add_u32", V(vFW4), S(sM0X), V(vFR))
    so = stmp(); so2 = stmp()
    g.salu("s_lshr_b32", S(so), S(sW), 1); g.salu("s_lshl_b32", S(so), S(so), 10)
    g.salu("s_and_b32", S(so2), S(sW), 1); g.salu("s_lshl_b32", S(so2), S(so2), 3)
    g.salu("s_add_u32", S(so), S(so), S(so2)); g.salu("s_add_u32", S(so), S(so), 4096)
    g.valu("v_add_u32", V(vFW2), S(so), V(vFR))
    so = stmp()
    g.salu("s_mul_i32", S(so), S(sW), 6144, scc=False); g.salu("s_add_u32", S(so), S(so), DGL)
    g.valu("v_add_u32", V(vDG), S(so), V(t2))
    g.valu("v_lshlrev_b32", V(t2), 5, V(ti))
    g.valu("v_add_u32", V(vSR), ST, V(t2))
    g.valu("v_lshl_add_u32", V(t2), V(t1), 9, V(vSR))
    g.valu("v_lshl_add_u32", V(t2), V(t0), 4, V(t2))
    so = stmp(); g.salu("s_lshl_b32", S(so), S(sW), 2)
    g.valu("v_add_u32", V(vSW), S(so), V(t2))
    g.valu("v_and_b32", V(t2), 3, V(ti))
    g.valu("v_mul_u32_u24", V(vIDX), 0x5555, V(t2))
    def tok_rc(t, r_, c_):
        g.valu("v_add_u32", V(c_), 16 * t, V(ti))
        if t == 1:
            g.add(f"v_cmp_ne_u32 vcc, 24, v{c_}", "valu", rd=[V(c_)], wr=["vcc"])
            g.valu("v_cndmask_b32", V(c_), 48, V(c_), "vcc")
        g.valu("v_mul_u32_u24", V(r_), 9363, V(c_))
        g.valu("v_lshrrev_b32", V(r_), 16, V(r_))
        g.valu("v_mul_u32_u24", V(t4), 7, V(r_))
        g.valu("v_sub_u32", V(c_), V(c_), V(t4))
        g.valu("v_sub_u32", V(r_), 6, V(r_))
    for t in range(3):
        tok_rc(t, t2, t3)
        g.valu("v_mul_u32_u24", V(t2), XP, V(t2))
        g.valu("v_mul_u32_u24", V(t3), CP, V(t3))
        g.valu("v_add3_u32", V(t2), V(t2), V(t3), S(sW96))
        g.valu("v_lshl_add_u32", V(t2), V(t0), 4, V(t2))
        g.valu("v_mul_u32_u24", V(t3), XP, V(t1))
        g.valu("v_add_u32", V(vCa[t]), V(t2), V(t3))
        g.valu("v_mul_u32_u24", V(t3), 2 * CP, V(t1))
        g.valu("v_add_u32", V(vCb[t]), V(t2), V(t3))
    g.valu("v_mov_b32", V(t2), "0x3f803f80")
    for i in range(4): g.valu("v_accvgpr_write_b32", A(ONES + i), V(t2))
    g.valu("v_lshrrev_b32", V(t2), 2, V(ti))
    for i in range(4):
        g.add(f"v_cmp_eq_u32 s[{sMK[i]}:{sMK[i]+1}], {i}, v{t2}", "valu", rd=[V(t2)], wr=[S(sMK[i], 2)])
    g.add(f"v_cmp_ne_u32 vcc, 2, v{tg}", "valu", rd=[V(tg)], wr=["vcc"])
    g.valu("v_mov_b32", V(t3), "0x3f80")
    for j in range(3):
        g.valu("v_cndmask_b32", V(dwv[3 + j]), V(t3), V(dwv[3 + j]), "vcc")
    DGR = SP[1]
    dgr = {(0, 0): SP[1], (0, 1): SP[1] + 4, (0, 2): SP[1] + 8, (1, 0): SP[1] + 12, (1, 1): AC[1], (1, 2): AC[1] + 4}
    dgw = {}
    for f in range(2):
        for j in range(3):
            for i in range(4):
                g.valu("v_cndmask_b32", V(dgr[(f, j)] + i), 0, V(dwv[f * 3 + j]), S(sMK[i], 2))
            dgw[(f, j)] = g.dsw("ds_write_b128", V(vDG), V(dgr[(f, j)], 4), (j * 2 + f) * 1024)
    g.valu("v_and_b32", V(t2), 1, V(ti))
    g.valu("v_lshlrev_b32", V(t2), 4, V(t2))
    g.valu("v_lshrrev_b32", V(t3), 1, V(ti))
    g.valu("v_lshlrev_b32", V(t4), 2, V(t0))
    g.valu("v_sub_u32", V(t3), V(t3), V(t4))
    for i in range(4):
        g.add(f"v_cmp_eq_u32 s[{sMK[i]}:{sMK[i]+1}], {i}, v{t3}", "valu", rd=[V(t3)], wr=[S(sMK[i], 2)])
    for j in range(3):
        g.valu("v_lshlrev_b32", V(dwv[6 + j]), V(t2), V(dwv[6 + j]))
        for i in range(4):
            g.valu("v_cndmask_b32", V(DD + 4 * j + i), 0, V(dwv[6 + j]), S(sMK[i], 2))

    def stats_tile(x, s_, q_):
        g.valu("v_add_f32", V(s_), V(x), V(x + 1))
        g.valu("v_mul_f32", V(q_), V(x), V(x))
        for i in range(1, 12):
            if i >= 2: g.valu("v_add_f32", V(s_), V(s_), V(x + i))
            g.valu("v_fmac_f32", V(q_), V(x + i), V(x + i), extra_rd=[V(q_)])
        g.add(f"v_permlane16_swap_b32 v{s_}, v{q_}", "perm", rd=[V(s_), V(q_)], wr=[V(s_), V(q_)])
        g.valu("v_add_f32", V(s_), V(s_), V(q_))
    def stats_pair(a, b, off):
        g.add(f"v_permlane32_swap_b32 v{a}, v{b}", "perm", rd=[V(a), V(b)], wr=[V(a), V(b)])
        g.valu("v_add_f32", V(a), V(a), V(b))
        return g.dsw("ds_write_b32", V(vSW), V(a), off)
    def ln_scalars(tile, r_, nb_):
        fs, fq = frag(), frag()
        o1 = g.dsr("ds_read_b128", V(fs, 4), V(vSR), tile * 512)
        o2 = g.dsr("ds_read_b128", V(fq, 4), V(vSR), tile * 512 + 16)
        g.valu("v_add_f32", V(fs), V(fs), V(fs + 1)); g.valu("v_add_f32", V(fs + 2), V(fs + 2), V(fs + 3))
        g.valu("v_add_f32", V(fq), V(fq), V(fq + 1)); g.valu("v_add_f32", V(fq + 2), V(fq + 2), V(fq + 3))
        g.valu("v_add_f32", V(fs), V(fs), V(fs + 2)); g.valu("v_add_f32", V(fq), V(fq), V(fq + 2))
        g.valu("v_mul_f32", V(fs), S(sRC), V(fs))
        g.valu("v_fma_f32", V(fs + 1), V(fs), V(fs), "-" + S(sEPS))
        g.valu("v_fma_f32", V(fq), V(fq), S(sRC), "-" + V(fs + 1))
        g.valu("v_rsq_f32", V(r_), V(fq), kind="trans")
        g.valu("v_mul_f32", V(nb_), V(fs), V(r_))
        return [o1, o2]
    def norm_tile(x, r_, nb_, base):
        for k in range(6):
            g.valu("v_fma_f32", V(NT + 6), V(x + 2 * k), V(r_), "-" + V(nb_))
            g.valu("v_fma_f32", V(NT + 7), V(x + 2 * k + 1), V(r_), "-" + V(nb_))
            g.valu("v_cvt_pk_bf16_f32", V(NT + k), V(NT + 6), V(NT + 7))
        w1 = g.dsw("ds_write_b128", V(vFW4), V(NT, 4), base)
        w2 = g.dsw("ds_write_b64", V(vFW2), V(NT + 4, 2), base)
        return [w1, w2]
    def proj_tile(part, hbase, dst_fn):
        a = acc(); rds = []
        for s in range(6):
            f = frag()
            rds.append(g.dsr("ds_read_b128", V(f, 4), V(vFR), hbase + s * 1024))
            for jt in range(3):
                w = A(WF(part, jt, s), 4); c = 0 if s == 0 else V(a + 4 * jt, 4)
                if part < 2: g.mfma(V(a + 4 * jt, 4), w, V(f, 4), c)
                else: g.mfma(V(a + 4 * jt, 4), V(f, 4), w, c)
        for jt in range(3):
            for k in range(2):
                g.valu("v_cvt_pk_bf16_f32", V(dst_fn(jt) + k), V(a + 4 * jt + 2 * k), V(a + 4 * jt + 2 * k + 1))
        return rds
    kdst = lambda t: (lambda jt: KR + 6 * t + 2 * jt)
    vdst = lambda t: (lambda jt: VR + 8 * jt + 2 * t)
    spn = [0]
    def s_tile(q):
        sp = SP[spn[0] % 2]; spn[0] += 1
        for kt in range(4):
            g.mfma(V(sp + 4 * kt, 4), V(KR + 6 * kt, 4), V(q, 4), 0 if kt < 3 else "v[0:3]")
        for kt in range(4):
            g.mfma(V(sp + 4 * kt, 4), V(KR + 6 * kt + 4, 2), V(q + 4, 2), V(sp + 4 * kt, 4), k=16)
        return sp
    mtn = [0]
    def softmax_tile(sp):
        m = MT + 2 * (mtn[0] % 2); t = m + 1; mtn[0] += 1
        g.valu("v_max3_f32", V(m), V(sp), V(sp + 1), V(sp + 2))
        g.valu("v_max3_f32", V(t), V(sp + 3), V(sp + 4), V(sp + 5))
        g.valu("v_max3_f32", V(m), V(m), V(sp + 6), V(sp + 7))
        g.valu("v_max3_f32", V(t), V(t), V(sp + 8), V(sp + 9))
        g.valu("v_max3_f32", V(m), V(m), V(sp + 10), V(sp + 11))
        g.valu("v_max3_f32", V(m), V(m), V(t), V(sp + 12))
        for sw in ("v_permlane16_swap_b32", "v_permlane32_swap_b32"):
            g.valu("v_mov_b32", V(t), V(m))
            g.add(f"{sw} v{m}, v{t}", "perm", rd=[V(m), V(t)], wr=[V(m), V(t)])
            g.valu("v_max_f32", V(m), V(m), V(t))
        g.valu("v_mul_f32", V(m), S(sC), V(m))
        for i in range(13):
            g.valu("v_fma_f32", V(sp + i), V(sp + i), S(sC), "-" + V(m))
            g.valu("v_exp_f32", V(sp + i), V(sp + i), kind="trans")
            if i % 2 == 1:
                g.valu("v_cvt_pk_bf16_f32", V(sp + i // 2), V(sp + i - 1), V(sp + i))
        g.valu("v_cvt_pk_bf16_f32", V(sp + 6), V(sp + 12), 0)
        g.valu("v_mov_b32", V(sp + 7), 0)
    def pv_tile(sp, obase, emask=None):
        a = acc(); sm = sp + 8
        g.mfma(V(sm, 4), A(ONES, 4), V(sp, 4), 0)
        for jt in range(3): g.mfma(V(a + 4 * jt, 4), V(VR + 8 * jt, 4), V(sp, 4), 0)
        g.mfma(V(sm, 4), A(ONES, 4), V(sp + 4, 4), V(sm, 4))
        for jt in range(3): g.mfma(V(a + 4 * jt, 4), V(VR + 8 * jt + 4, 4), V(sp + 4, 4), V(a + 4 * jt, 4))
        g.valu("v_rcp_f32", V(sm), V(sm), kind="trans")
        for k in range(6):
            g.valu("v_mul_f32", V(a + 2 * k), V(sm), V(a + 2 * k))
            g.valu("v_mul_f32", V(a + 2 * k + 1), V(sm), V(a + 2 * k + 1))
            g.valu("v_cvt_pk_bf16_f32", V(a + k), V(a + 2 * k), V(a + 2 * k + 1))
        if emask is None:
            return [g.dsw("ds_write_b128", V(vFW4), V(a, 4), obase), g.dsw("ds_write_b64", V(vFW2), V(a + 4, 2), obase)]
        txt = (f"s_mov_b32 exec_lo, {hex(emask)}\n    s_mov_b32 exec_hi, {hex(emask)}\n"
               f"    ds_write_b128 v{vFW4}, {V(a,4)} offset:{obase}\n    ds_write_b64 v{vFW2}, {V(a+4,2)} offset:{obase}\n"
               f"    s_mov_b64 exec, -1")
        return [g.add(txt, "dsw", rd=[V(vFW4), V(vFW2), V(a, 6)], cost=44, n=2, opc="ds_write_grp")]
    CB8 = [SP[0], SP[0] + 8, SP[1], SP[1] + 8]
    SM4 = [VR, VR + 8, VR + 16, QR]
    cbn = [0]; smn = [0]
    def cb8():
        r = CB8[cbn[0] % 4]; cbn[0] += 1; return r
    def sm4():
        r = SM4[smn[0] % 4]; smn[0] += 1; return r
    def conv(xr, dg=None, cb=None):
        rds = []
        for j in range(3):
            if dg is None:
                d0, d1 = sm4(), sm4()
                o = g.dsr("ds_read_b128", V(d0, 4), V(vDG), (j * 2) * 1024); p.edge(dgw[(0, j)], o, "ORD")
                o = g.dsr("ds_read_b128", V(d1, 4), V(vDG), (j * 2 + 1) * 1024); p.edge(dgw[(1, j)], o, "ORD")
            else: d0, d1 = dg[(0, j)], dg[(1, j)]
            for t in range(3):
                d = V(xr + 12 * t + 4 * j, 4)
                f = frag(); b0 = (cb or cb8)(); b1 = (cb or cb8)()
                rds.append(g.dsr("ds_read_b128", V(f, 4), V(vCb[t]), X_ + 2 * XP + 32 * j))
                rds.append(g.dsr("ds_read_b128", V(b0, 4), V(vCa[t]), X_ + 32 * j))
                rds.append(g.dsr("ds_read_b128", V(b0 + 4, 4), V(vCa[t]), X_ + CP + 32 * j))
                rds.append(g.dsr("ds_read_b128", V(b1, 4), V(vCa[t]), X_ + 2 * CP + 32 * j))
                rds.append(g.dsr("ds_read_b128", V(b1 + 4, 4), V(vCa[t]), X_ + XP + CP + 32 * j))
                g.mfma(d, V(DD + 4 * j, 4), V(f, 4), 0)
                g.smfmac(d, V(d0, 4), V(b0, 8), V(vIDX))
                g.smfmac(d, V(d1, 4), V(b1, 8), V(vIDX))
        return rds
    def stats(xr, extra=None):
        s = [NT, NT + 2, NT + 4, NT + 6]
        for t in range(3): stats_tile(xr + 12 * t, s[t], s[t] + 1)
        w = [stats_pair(s[0], s[1], 0)]
        if extra is None: g.valu("v_mov_b32", V(s[3]), V(s[2]))
        else: stats_tile(extra, s[3], s[3] + 1)
        w.append(stats_pair(s[2], s[3], 1024))
        return w
    of4 = [SP[0], SP[0] + 4, SP[0] + 8, SP[0] + 12, SP[1], SP[1] + 4, SP[1] + 8, SP[1] + 12]
    ofn = [0]
    def ofrag():
        r = of4[ofn[0] % 8]; ofn[0] += 1; return r
    def outproj(tiles, wo_dma):
        rds = []
        for s in (0, 1, 4, 2, 3, 5):
            if s in WOA: w = [A(WOF(jt, s), 4) for jt in range(3)]
            else:
                w = []
                for jt in range(3):
                    r = sm4()
                    for half in range(2):
                        blk = KSTEP_BLOCKS[s][half] - 6
                        o = g.dsr("ds_read_b64_tr_b16", V(r + 2 * half, 2), V(vTR), blk * 1536 + 32 * jt)
                        for d in wo_dma: p.edge(d, o, "CMP")
                    w.append(V(r, 4))
            fr = []
            for (x, ob, _, _) in tiles:
                f = ofrag(); fr.append(f)
                rds.append(g.dsr("ds_read_b128", V(f, 4), V(vFR), ob + s * 1024))
            for jt in range(3):
                for (x, _, _, _), f in zip(tiles, fr):
                    g.mfma(V(x + 4 * jt, 4), w[jt], V(f, 4), V(x + 4 * jt, 4))
        for jt in range(3):
            for (x, _, vo, so) in tiles:
                b = x + 4 * jt
                g.valu("v_cvt_pk_bf16_f32", V(b), V(b), V(b + 1))
                g.valu("v_cvt_pk_bf16_f32", V(b + 1), V(b + 2), V(b + 3))
                g.add(f"buffer_store_dwordx2 {V(b,2)}, v{vo}, s[{sOUT}:{sOUT+3}], s{so} offen offset:{32*jt}", "vst",
                      rd=[V(b, 2), V(vo), S(so), "PTR"])
        return rds

    XE = KR
    for j in range(3):
        d = V(XE + 4 * j, 4)
        g.mfma(d, V(DD + 4 * j, 4), V(EB4[j], 4), 0)
        g.smfmac(d, V(dgr[(0, j)], 4), V(EB8[j][0], 8), V(vIDX))
        g.smfmac(d, V(dgr[(1, j)], 4), V(EB8[j][1], 8), V(vIDX))
    PB0 = g.bar("PB0", x0ops)
    pcb = [XR[1], XR[1] + 8, XR[1] + 16, XR[1] + 24]; pcn = [0]
    def pcb8():
        r = pcb[pcn[0] % 4]; pcn[0] += 1; return r
    crd = conv(XR[0], dg=dgr, cb=pcb8); g.after(crd, PB0)
    dump(XR[0], 36, 0); dump(XE, 12, 1)
    sw = stats(XR[0], extra=XE)
    vPK = QR
    g.valu("v_lshlrev_b32", V(vPK), 4, "v0")
    sPK = 18
    g.salu("s_mul_i32", S(sPK), "s2", 3 * 4096, scc=False)
    g.salu("s_add_u32", S(sPK), S(sPK), 0x8000000)
    pk = []
    for j in range(3):
        so = stmp(); g.salu("s_add_u32", S(so), S(sPK), 4096 * j)
        pk.append(g.add(f"buffer_store_dwordx4 {V(XE+4*j,4)}, v{vPK}, s[{sWS}:{sWS+3}], s{so} offen", "vst",
                  rd=[V(XE + 4 * j, 4), V(vPK), S(so), "PTR"], cost=20))
    for c in range(6):
        w_read(0, c); w_dma(1, c, c)
    B1 = g.bar("B1(-1)", sw + crd)
    xops = x_dma(1, 2500); g.after(xops, B1)
    hw = []
    for t in range(3):
        g.after(ln_scalars(t, LN + 2 * (t & 1), LN + 2 * (t & 1) + 1), B1)
        hw += norm_tile(XR[0] + 12 * t, LN + 2 * (t & 1), LN + 2 * (t & 1) + 1, HB[0] + 6144 * t)
    g.after(ln_scalars(3, LN + 2, LN + 3), B1)
    hw += norm_tile(XE, LN + 2, LN + 3, HEB)
    B2 = g.bar("B2(-1)", hw)
    for c in range(6):
        w_read(1, c); w_dma(2, c, c)
    he_rd = []
    r = proj_tile(0, HEB, kdst(3)); g.after(r, B2); he_rd += r
    hrd = []
    for t in range(3):
        r = proj_tile(0, HB[0] + 6144 * t, kdst(t)); g.after(r, B2); hrd += r
    r = proj_tile(1, HEB, lambda jt: QE + 2 * jt); g.after(r, B2); he_rd += r
    for i in range(3):
        u = NT + 0; rw = NT + 1
        g.valu("v_and_b32", V(u), 63, "v0")
        g.valu("v_add_u32", V(u), 64 * i, V(u))
        g.valu("v_mul_u32_u24", V(rw), 10923, V(u))
        g.valu("v_lshrrev_b32", V(rw), 16, V(rw))
        g.valu("v_mul_u32_u24", V(rw), 768, V(rw))
        g.valu("v_sub_u32", V(WQ_OFF[i]), V(WQ_OFF[i]), V(rw))
    for c in range(6):
        w_read(2, c); w_dma(3, (c + 3) % 6, c)
    wo_dma = [o for c in (3, 4, 5) for o in chunk_dma[(3, c)][0]]
    r = proj_tile(2, HEB, vdst(3)); g.after(r, B2); he_rd += r
    trd = []
    for c in range(3): trd += w_read(3, c)
    ti2, tg2, r2, c2, t4b = NT, NT + 1, NT + 2, NT + 3, NT + 4
    g.valu("v_and_b32", V(ti2), 15, "v0"); g.valu("v_bfe_u32", V(tg2), "v0", 4, 2)
    g.valu("v_lshl_add_u32", V(tg2), V(tg2), 3, S(sW96))
    for t in range(3):
        g.valu("v_add_u32", V(c2), 16 * t, V(ti2))
        if t == 1:
            g.add(f"v_cmp_ne_u32 vcc, 24, v{c2}", "valu", rd=[V(c2)], wr=["vcc"])
            g.valu("v_cndmask_b32", V(c2), 48, V(c2), "vcc")
        g.valu("v_mul_u32_u24", V(r2), 9363, V(c2))
        g.valu("v_lshrrev_b32", V(r2), 16, V(r2))
        g.valu("v_mul_u32_u24", V(t4b), 7, V(r2))
        g.valu("v_sub_u32", V(c2), V(c2), V(t4b))
        g.valu("v_sub_u32", V(r2), 6, V(r2))
        g.valu("v_mul_u32_u24", V(r2), ROW, V(r2))
        g.valu("v_mul_u32_u24", V(c2), 384, V(c2))
        g.valu("v_add3_u32", V(vO[t]), V(r2), V(c2), V(tg2))
    B3 = g.bar("B3(-1)", xops)
    dump(KR, 24, 2); dump(QE, 6, 3)
    ord_prev = []
    for n in range(4):
        xc, xn = XR[n & 1], XR[(n + 1) & 1]
        hb, hbn = HB[n & 1], HB[(n + 1) & 1]
        need1 = []
        if n > 0:
            r = outproj([(xn + 12 * t, OB + 6144 * t, vO[t], sORGn[n - 1]) for t in range(3)], wo_dma)
            g.after(r, B3); need1 += r
        else:
            need1 += he_rd + trd + [o for k in (3, 4, 5) for o in []]
        if n < 3:
            crd = conv(xn); g.after(crd, B3); need1 += crd
            need1 += stats(xn)
        B1 = g.bar(f"B1({n})", need1)
        xops = []
        if n < 2:
            xops = x_dma(n + 2, 2500); g.after(xops, B1)
        g.salu("s_mov_b64", "vcc", 0, scc=False)
        g.add(f"s_mov_b32 vcc_{'lo' if n < 2 else 'hi'}, {hex(0xffff << (16 * (n & 1)))}", "salu", rd=["vcc"], wr=["vcc"])
        g.valu("v_mov_b32", "v0", "0xff800000")
        g.valu("v_cndmask_b32_e64", "v0", "v0", 0, "vcc")
        ow = []
        spE = s_tile(QE)
        softmax_tile(spE)
        r = proj_tile(1, hb, lambda jt: QR + 2 * jt); g.after(r, B2); hrd += r
        sp = s_tile(QR)
        for t in range(3):
            r = proj_tile(2, hb + 6144 * t, vdst(t)); g.after(r, B2); hrd += r
        if n == 0: dump(VR, 24, 4); dump(QR, 6, 5)
        ow += pv_tile(spE, HEB, emask=(0x000F000F << (4 * n)))
        hw = []
        for t in range(3):
            if n < 3:
                g.after(ln_scalars(t, LN + 2 * (t & 1), LN + 2 * (t & 1) + 1), B1)
                w_ = norm_tile(xn + 12 * t, LN + 2 * (t & 1), LN + 2 * (t & 1) + 1, hbn + 6144 * t); g.after(w_, B1); hw += w_
                if t == 2: B2n = g.bar(f"B2({n})", hw)
            if t < 2:
                r = proj_tile(1, hb + 6144 * (t + 1), lambda jt: QR + 2 * jt); g.after(r, B2); hrd += r
            softmax_tile(sp)
            if n == 0 and t == 0: dump(sp, 8, 6)
            spn_ = s_tile(QR) if t < 2 else None
            hrd_next = []
            if t == 2 and n < 3:
                r = proj_tile(0, hbn, kdst(0)); g.after(r, B2n); hrd_next += r
            ow += pv_tile(sp, OB + 6144 * t)
            sp = spn_
        g.after(ow, B1)
        B3 = g.bar(f"B3({n})", ow + xops + hrd)
        hrd = hrd_next
        if n < 3:
            B2 = B2n
            for t in (1, 2):
                r = proj_tile(0, hbn + 6144 * t, kdst(t)); g.after(r, B2); hrd += r
    XE2 = XR[0]
    vE = NT; tq = NT + 1
    g.valu("v_subrev_u32", V(tq), FB, V(vFW4))
    for j in range(3):
        so = stmp(); g.salu("s_add_u32", S(so), S(sPK), 4096 * j)
        o = g.add(f"buffer_load_dwordx4 {V(XE2+4*j,4)}, v{tq}, s[{sWS}:{sWS+3}], s{so} offen", "vld",
                  rd=[V(tq), S(so), "PTR"], wr=[V(XE2 + 4 * j, 4)], lat=1000)
        p.edge(pk[j], o, "CMP")
    g.valu("v_bfe_u32", V(vE), V(tq), 6, 2)
    g.valu("v_mul_u32_u24", V(vE), 2688, V(vE))
    g.valu("v_bfe_u32", V(NT + 2), V(tq), 8, 2)
    g.valu("v_lshl_add_u32", V(vE), V(NT + 2), 3, V(vE))
    g.valu("v_add_u32", V(vE), S(sW96), V(vE))
    g.valu("v_add_u32", V(vE), 3 * ROW + 3 * 384, V(vE))
    r = outproj([(XR[1] + 12 * t, OB + 6144 * t, vO[t], sORGn[3]) for t in range(3)] + [(XE2, HEB, vE, sORG)], wo_dma)
    g.after(r, B3)

    out, st = schedule(p, inorder=opts.get("inorder", False), window=opts.get("window", 100000), st_gap=opts.get("st_gap", 200))
    print("sched:", st, "ops", len(p.ops), file=sys.stderr)
    body = "\n".join("    " + x[0] + (f"   ; t={x[2].t} {x[2].tag}" if (x[2] is not None and opts.get("annot")) else "") for x in out)
    ref = open(f"cdna_kernels/{NAME}.s.ref").read().splitlines()
    hdr = "\n".join(l for l in ref[:10])
    asm = f"""{hdr}
; @launch grid=(256,1,1) block=(256,1,1) lds={LDS_END}
.amdgcn_target "amdgcn-amd-amdhsa--gfx950"
.text
.globl {NAME}_kernel
.p2align 8
.type {NAME}_kernel,@function
{NAME}_kernel:
{head}
{body}
L_end:
    s_endpgm
.section .rodata,"a"
.p2align 6
.amdhsa_kernel {NAME}_kernel
  .amdhsa_next_free_vgpr 512
  .amdhsa_next_free_sgpr 102
  .amdhsa_accum_offset 256
  .amdhsa_group_segment_fixed_size 0
  .amdhsa_kernarg_size 56
  .amdhsa_user_sgpr_count 2
  .amdhsa_user_sgpr_kernarg_segment_ptr 1
  .amdhsa_system_sgpr_workgroup_id_x 1
.end_amdhsa_kernel
"""
    return asm, out

if __name__ == "__main__":
    opts = {}
    outp = f"cdna_kernels/{NAME}.s"
    for a in sys.argv[1:]:
        k, v = a.split("=")
        if k == "out": outp = v
        else: opts[k] = int(v)
    asm, _ = build(opts)
    open(outp, "w").write(asm)
```

```python
import subprocess, sys, re
N = "standalone__window_attn_davit__vision_kernel"
base = open(sys.argv[1]).read(); tag = sys.argv[2]
ll = re.search(r"; @launch grid=\(256,1,1\) block=\((\d+),1,1\) lds=(\d+)", base)
base = base.replace(N + ":\n", N + ":\n    s_memrealtime s[98:99]\n    s_memtime s[96:97]\n", 1)
tail = """    s_waitcnt vmcnt(0)
    s_memrealtime s[66:67]
    s_memtime s[68:69]
    s_lshl_b32 s64, s2, 2
    s_add_u32 s64, s64, s52
    s_lshl_b32 s64, s64, 4
    v_mov_b32 v1, s64
    s_waitcnt lgkmcnt(0)
    s_sub_u32 s68, s68, s96
    s_sub_u32 s66, s66, s98
    v_mov_b32 v4, s66
    v_mov_b32 v5, s68
    buffer_store_dwordx2 v[4:5], v1, s[48:51], 0 offen
L_end:"""
base = base.replace("L_end:", tail, 1)
for mode in ("avg", "cyc"):
    red = "    s_mov_b32 s27, 0\n"
    for i in range(64): red += f"    v_readlane_b32 s26, v{4 if mode == 'avg' else 5}, {i}\n    s_nop 1\n    s_add_u32 s27, s27, s26\n"
    sel = "s_mul_i32 s27, s27, 10\n    s_lshr_b32 s30, s27, 6" if mode == "avg" else "s_lshr_b32 s30, s27, 6"
    k2 = f""".p2align 8
.globl spin_kernel
.type spin_kernel,@function
spin_kernel:
    s_cmp_ge_u32 s2, 1
    s_cbranch_scc1 L_e2
    s_load_dwordx2 s[4:5], s[0:1], 48
    v_mul_u32_u24 v1, 208, v0
    s_waitcnt lgkmcnt(0)
    s_mov_b32 s6, 0x100000
    s_mov_b32 s7, 0x20000
    buffer_load_dwordx2 v[4:5], v1, s[4:7], 0 offen
    s_waitcnt vmcnt(0)
{red}
    {sel}
    s_min_u32 s30, s30, 200000
    s_memrealtime s[32:33]
    s_waitcnt lgkmcnt(0)
L_sp:
    s_memrealtime s[34:35]
    s_waitcnt lgkmcnt(0)
    s_sub_u32 s36, s34, s32
    s_cmp_lt_u32 s36, s30
    s_cbranch_scc1 L_sp
L_e2:
    s_endpgm
"""
    t = base.replace(ll.group(0), f"; @launch kernel={N} grid=(256,1,1) block=({ll.group(1)},1,1) lds={ll.group(2)}\n; @launch kernel=spin_kernel grid=(1,1,1) block=(64,1,1) lds=0")
    t = t.replace('.section .rodata,"a"', k2 + '.section .rodata,"a"')
    t += """.p2align 6
.amdhsa_kernel spin_kernel
  .amdhsa_next_free_vgpr 16
  .amdhsa_next_free_sgpr 48
  .amdhsa_accum_offset 16
  .amdhsa_group_segment_fixed_size 0
  .amdhsa_kernarg_size 56
  .amdhsa_user_sgpr_count 2
  .amdhsa_user_sgpr_kernarg_segment_ptr 1
  .amdhsa_system_sgpr_workgroup_id_x 1
.end_amdhsa_kernel
"""
    open(f"q_{tag}_{mode}.s", "w").write(t)
```
